```python
import torch

def _softmax(x, axis=-1):
    return torch.softmax(x, dim=axis)
def _gelu(x):
    return torch.nn.functional.gelu(x, approximate="tanh")
def _silu(x):
    return torch.nn.functional.silu(x)
def _sigmoid(x):
    return torch.sigmoid(x)
def _layernorm(x, axis=-1, eps=1e-5):
    m = x.mean(dim=axis, keepdim=True)
    v = x.var(dim=axis, keepdim=True, unbiased=False)
    return (x - m) / torch.sqrt(v + eps)
def _scatter_add(tgt, idx, src, axis=0):
    return tgt.clone().index_add_(axis, idx, src)
def _segment_sum(src, seg, n):
    out = torch.zeros((n,) + src.shape[1:], dtype=src.dtype)
    return out.index_add_(0, seg, src)
def _pad(x, pw):
    flat = tuple(v for pair in reversed(pw) for v in pair)
    return torch.nn.functional.pad(x, flat)

kernel_name = 'recurrent_scan__ssm_conv_s5__geglu_ffn__prompt'

def setup_inputs():

    _w = (lambda a: (lambda t: t.to(torch.bfloat16) if t.is_floating_point() else t)(torch.as_tensor(a)))
    def _A_setup():
        B, S, D = 1, 2048, 1024
        P = D
        Lambda_re = -0.5 * (lambda _x: torch.exp(torch.as_tensor(_x)))((lambda *s: torch.randn(*s, dtype=torch.bfloat16) * 0.2)(P))
        Lambda_im = (lambda *s: torch.randn(*s, dtype=torch.bfloat16) * 0.4)(P) * 1.0
        B_re = (lambda *s: torch.randn(*s, dtype=torch.bfloat16) * 0.2)(P, D) * (D ** -0.5)
        B_im = (lambda *s: torch.randn(*s, dtype=torch.bfloat16) * 0.2)(P, D) * (D ** -0.5)
        C_re = (lambda *s: torch.randn(*s, dtype=torch.bfloat16) * 0.2)(D, P) * (P ** -0.5)
        C_im = (lambda *s: torch.randn(*s, dtype=torch.bfloat16) * 0.2)(D, P) * (P ** -0.5)
        log_dt = (lambda *s: torch.randn(*s, dtype=torch.bfloat16) * 0.2)(P) * 0.3 - 2.0
        Dskip = (lambda *s: torch.randn(*s, dtype=torch.bfloat16) * 0.05)(D)
        return {
            "x": _w((lambda *s: torch.randn(*s, dtype=torch.bfloat16) * 0.05)(B, S, D)),
            "Lambda_re": _w(Lambda_re),
            "Lambda_im": _w(Lambda_im),
            "B_re": _w(B_re),
            "B_im": _w(B_im),
            "C_re": _w(C_re),
            "C_im": _w(C_im),
            "log_dt": _w(log_dt),
            "Dskip": _w(Dskip),
        }
    _A_in = _A_setup()

    def _B_setup():
        B, S, D, F = 1, 2048, 1024, 3584
        return {
            "x": _w((lambda *s: torch.randn(*s, dtype=torch.bfloat16) * 0.05)(B, S, D)),
            "w_gate": _w((lambda *s: torch.randn(*s, dtype=torch.bfloat16) * 0.05)(D, F)),
            "w_up": _w((lambda *s: torch.randn(*s, dtype=torch.bfloat16) * 0.05)(D, F)),
            "w_down": _w((lambda *s: torch.randn(*s, dtype=torch.bfloat16) * 0.05)(F, D)),
        }
    _B_in = _B_setup()

    return {
        "A_x": _A_in["x"],
        "A_Lambda_re": _A_in["Lambda_re"],
        "A_Lambda_im": _A_in["Lambda_im"],
        "A_B_re": _A_in["B_re"],
        "A_B_im": _A_in["B_im"],
        "A_C_re": _A_in["C_re"],
        "A_C_im": _A_in["C_im"],
        "A_log_dt": _A_in["log_dt"],
        "A_Dskip": _A_in["Dskip"],
        "B_x": _B_in["x"],
        "B_w_gate": _B_in["w_gate"],
        "B_w_up": _B_in["w_up"],
        "B_w_down": _B_in["w_down"],
    }

def reference(A_x, A_Lambda_re, A_Lambda_im, A_B_re, A_B_im, A_C_re, A_C_im, A_log_dt, A_Dskip, B_x, B_w_gate, B_w_up, B_w_down):
    def _A_ref(x, Lambda_re, Lambda_im, B_re, B_im, C_re, C_im, log_dt, Dskip):
        Bsz, L, H = x.shape
        Lam = Lambda_re + 1j * Lambda_im
        Bmat = B_re + 1j * B_im
        Cmat = C_re + 1j * C_im
        dt = torch.exp(log_dt)
        Lam_bar = torch.exp(dt * Lam)
        B_bar = ((Lam_bar - 1.0) / Lam)[:, None] * Bmat
        Bu = torch.einsum("bld,pd->blp", x + 0j, B_bar)
        h = torch.zeros_like(Bu[:, 0, :])
        hs = []
        for t in range(L):
            h = Lam_bar[None, :] * h + Bu[:, t, :]
            hs.append(h)
        hseq = torch.stack(hs, 1)
        y = 2.0 * torch.einsum("blp,dp->bld", hseq, Cmat).real + x * Dskip[None, None, :]
        return y

    def _B_ref(x, w_gate, w_up, w_down):
        return (_gelu(x @ w_gate) * (x @ w_up)) @ w_down

    x = A_x
    xn = _layernorm(x, axis=-1)
    s = _A_ref(xn, A_Lambda_re, A_Lambda_im, A_B_re, A_B_im, A_C_re, A_C_im, A_log_dt, A_Dskip)
    g = _silu(_B_ref(xn, B_w_gate, B_w_up, B_w_down))
    return x + s * g
```

```python
class K:
    def __init__(self, name):
        self.name = name
        self.l = []
        self.lab = 0
    def __call__(self, s):
        for x in s.strip("\n").split("\n"):
            x = x.strip()
            if x:
                self.l.append("    " + x if not x.endswith(":") else x)
    def label(self, stem):
        self.lab += 1
        return f"L_{self.name}_{stem}_{self.lab}"
    def text(self):
        return "\n".join(self.l)

def kernel_text(k, vgpr, sgpr, accum, extra=""):
    return f"""
.text
.globl {k.name}
.p2align 8
.type {k.name},@function
{k.name}:
{k.text()}
    s_endpgm
.section .rodata,"a"
.p2align 6
.amdhsa_kernel {k.name}
  .amdhsa_next_free_vgpr {vgpr}
  .amdhsa_next_free_sgpr {sgpr}
  .amdhsa_accum_offset {accum}
  .amdhsa_group_segment_fixed_size 0
  .amdhsa_kernarg_size 128
  .amdhsa_user_sgpr_count 2
  .amdhsa_user_sgpr_kernarg_segment_ptr 1
  .amdhsa_system_sgpr_workgroup_id_x 1
{extra}.end_amdhsa_kernel
"""

ARG = dict(x=0, lre=8, lim=16, bre=24, bim=32, cre=40, cim=48, logdt=56, dskip=64, bx=72,
           wg=80, wu=88, wd=96, out=104, dbg=112, ws=120)

WS_XN   = 0
WS_BURE = 8  << 20
WS_BUIM = 16 << 20
WS_ACT  = 32 << 20
WS_H    = 48 << 20
```

```python
def swap23(k):
    return (k & ~12) | ((k >> 1) & 4) | ((k << 1) & 8)
KS_MAP = {
    8:  (lambda k: k, lambda k: 2*((k>>1)&1) + 4*((k>>3)&1)),
    14: (swap23, lambda k: 0),
    16: (lambda k: k, lambda k: 2*(k&3) + 8*((k>>3)&1)),
}
def conflicts_tr(C, rp, f, blk, kk, h):
    worst = 0
    for half in range(2):
        banks = {}
        for l in range(half*32, half*32+32):
            g = l >> 4; r = (l & 15) >> 2; c = l & 3
            k = kk*32 + 8*g + 4*h + r
            chunk = 2*blk + (c >> 1)
            addr = rp(k)*C*16 + ((chunk ^ f(k)) * 16) + (c & 1)*8
            for d in (0, 1):
                banks.setdefault((addr//4+d) % 64, set()).add(addr//4+d)
        worst = max(worst, max(len(v) for v in banks.values()))
    return worst
def evaluate(C, rp, f):
    w = 0
    for blk in range(C//2):
        for kk in range(2):
            for h in range(2):
                w = max(w, conflicts_tr(C, rp, f, blk, kk, h))
    return w
if __name__ == "__main__":
    for C,(rp,f) in KS_MAP.items():
        s = set((rp(k), c ^ f(k)) for k in range(64) for c in range(C))
        assert len(s) == 64*C and all(c < C for _, c in s)
        print("C", C, evaluate(C, rp, f))
```

```python
from banksim import KS_MAP

class Piece:
    def __init__(self, name, flavor, nblk, srd, ld, soff, rot=0):
        self.name, self.flavor, self.nblk, self.srd, self.ld, self.soff, self.rot = name, flavor, nblk, srd, ld, soff, rot
        self.nchunk = nblk*16*8 if flavor == 'KC' else 64*2*nblk
        self.ndma = self.nchunk // 64
        self.bytes = self.nchunk * 16
        self.kadv = 128 if flavor == 'KC' else 64*ld
        self.lds = None
        self.vslots = []
        self.vbase = []

def emit_dma_setup(k, p, NW, vtmp, s_wk, v_lane):
    nslots = (p.ndma + NW - 1) // NW
    t0, t1, t2 = vtmp
    for s in range(nslots):
        v = p.vslots[s]
        k(f"s_lshl_b32 s96, {s_wk}, 6")
        k(f"s_add_u32 s96, s96, {64*NW*s}")
        k(f"v_add_u32 v{t0}, s96, v{v_lane}")
        if p.flavor == 'KC':
            k(f"v_lshrrev_b32 v{t1}, 3, v{t0}")
            k(f"v_xor_b32 v{t2}, v{t1}, v{t0}")
            k(f"v_and_b32 v{t2}, 7, v{t2}")
            k(f"v_lshlrev_b32 v{t2}, 4, v{t2}")
            k(f"s_mov_b32 s96, {p.ld}")
            k(f"v_mul_lo_u32 v{t1}, v{t1}, s96")
            k(f"v_add_u32 v{v}, v{t1}, v{t2}")
        else:
            C = 2*p.nblk
            rp, f = KS_MAP[C]
            magic = ((1 << 32) + C - 1) // C
            k(f"s_mov_b32 s96, {magic}")
            k(f"v_mul_hi_u32 v{t1}, v{t0}, s96")
            k(f"s_mov_b32 s96, {C}")
            k(f"v_mul_lo_u32 v{t2}, v{t1}, s96")
            k(f"v_sub_u32 v{t2}, v{t0}, v{t2}")
            for x in range(64*C):
                assert (x*magic) >> 32 == x // C
            if C == 14:
                k(f"v_and_b32 v{t0}, 0xfffffff3, v{t1}")
                k(f"v_lshrrev_b32 v{v}, 1, v{t1}")
                k(f"v_and_b32 v{v}, 4, v{v}")
                k(f"v_or_b32 v{t0}, v{t0}, v{v}")
                k(f"v_lshlrev_b32 v{v}, 1, v{t1}")
                k(f"v_and_b32 v{v}, 8, v{v}")
                k(f"v_or_b32 v{t1}, v{t0}, v{v}")
            elif C == 16:
                k(f"v_and_b32 v{t0}, 3, v{t1}")
                k(f"v_lshlrev_b32 v{t0}, 1, v{t0}")
                k(f"v_and_b32 v{v}, 8, v{t1}")
                k(f"v_or_b32 v{t0}, v{t0}, v{v}")
                k(f"v_xor_b32 v{t2}, v{t2}, v{t0}")
            elif C == 8:
                k(f"v_and_b32 v{t0}, 2, v{t1}")
                k(f"v_lshrrev_b32 v{v}, 1, v{t1}")
                k(f"v_and_b32 v{v}, 4, v{v}")
                k(f"v_or_b32 v{t0}, v{t0}, v{v}")
                k(f"v_xor_b32 v{t2}, v{t2}, v{t0}")
            else:
                raise NotImplementedError
            k(f"v_lshlrev_b32 v{t2}, 4, v{t2}")
            k(f"s_mov_b32 s96, {p.ld}")
            k(f"v_mul_lo_u32 v{t1}, v{t1}, s96")
            k(f"v_add_u32 v{v}, v{t1}, v{t2}")

def emit_dma_issue(k, p, NW, s_wk1024, stage_off):
    nslots = (p.ndma + NW - 1) // NW
    for s in range(nslots):
        full = (p.ndma - NW*s) >= NW
        lab = None
        if not full:
            lab = k.label("dskip")
            k(f"s_cmp_lt_u32 {s_wk1024}, {(p.ndma - NW*s)*1024}")
            k(f"s_cbranch_scc0 {lab}")
        k(f"s_add_u32 m0, {s_wk1024}, {p.lds + stage_off + 1024*NW*s}")
        k("s_nop 0")
        k(f"buffer_load_dwordx4 v{p.vslots[s]}, s[{p.srd}:{p.srd+3}], {p.soff} offen lds")
        if lab:
            k(f"{lab}:")

def emit_read_setup(k, p, v_lane, vtmp, extra_rows=None):
    t0, t1, t2 = vtmp
    if p.flavor == 'KC':
        for kk in range(2):
            v = p.vbase[kk]
            k(f"v_lshrrev_b32 v{t0}, 4, v{v_lane}")
            k(f"v_add_u32 v{t0}, {kk*4}, v{t0}")
            k(f"v_xor_b32 v{t0}, v{t0}, v{v_lane}")
            k(f"v_and_b32 v{t0}, 7, v{t0}")
            k(f"v_lshlrev_b32 v{t0}, 4, v{t0}")
            k(f"v_and_b32 v{t1}, 15, v{v_lane}")
            k(f"v_lshlrev_b32 v{t1}, 7, v{t1}")
            k(f"v_add3_u32 v{v}, v{t0}, v{t1}, {p.lds}" if p.lds <= 64 else
              f"v_add_u32 v{v}, v{t0}, v{t1}\nv_add_u32 v{v}, {p.lds}, v{v}")
            if extra_rows is not None:
                k(f"v_add_u32 v{v}, {extra_rows}, v{v}")
    else:
        C = 2*p.nblk
        rp, f = KS_MAP[C]
        assert C == 14, "non separable KS reads not implemented here"
        for h in range(2):
            v = p.vbase[h]
            k(f"v_lshrrev_b32 v{t0}, 4, v{v_lane}")
            k(f"v_and_b32 v{t1}, 1, v{t0}")
            k(f"v_lshlrev_b32 v{t1}, 2, v{t1}")
            k(f"v_lshrrev_b32 v{t0}, 1, v{t0}")
            k(f"v_lshlrev_b32 v{t0}, 4, v{t0}")
            k(f"v_add_u32 v{t0}, v{t0}, v{t1}")
            k(f"v_bfe_u32 v{t1}, v{v_lane}, 2, 2")
            k(f"v_add3_u32 v{t0}, v{t0}, v{t1}, {8*h}")
            k(f"v_mul_u32_u24 v{t0}, {C*16}, v{t0}")
            k(f"v_and_b32 v{t1}, 3, v{v_lane}")
            k(f"v_lshlrev_b32 v{t1}, 3, v{t1}")
            k(f"v_add_u32 v{v}, v{t0}, v{t1}")
            k(f"v_add_u32 v{v}, {p.lds}, v{v}")

def emit_read_setup_ks_blk(k, p, v_lane, vtmp, s_blk0, nb):
    t0, t1, t2 = vtmp
    C = 2*p.nblk
    assert C in (8, 16)
    for h in range(2):
        for b in range(nb):
            v = p.vbase[h*nb + b]
            k(f"v_lshrrev_b32 v{t0}, 4, v{v_lane}")
            k(f"v_lshlrev_b32 v{t0}, 3, v{t0}")
            k(f"v_bfe_u32 v{t1}, v{v_lane}, 2, 2")
            k(f"v_add3_u32 v{t0}, v{t0}, v{t1}, {4*h}")
            if C == 8:
                k(f"v_and_b32 v{t1}, 2, v{t0}")
                k(f"v_lshrrev_b32 v{t2}, 1, v{t0}")
                k(f"v_and_b32 v{t2}, 4, v{t2}")
                k(f"v_or_b32 v{t1}, v{t1}, v{t2}")
            else:
                k(f"v_and_b32 v{t1}, 3, v{t0}")
                k(f"v_lshlrev_b32 v{t1}, 1, v{t1}")
                k(f"v_and_b32 v{t2}, 8, v{t0}")
                k(f"v_or_b32 v{t1}, v{t1}, v{t2}")
            k(f"s_add_u32 s96, {s_blk0}, {b}")
            k(f"s_lshl_b32 s96, s96, 1")
            k(f"v_bfe_u32 v{t2}, v{v_lane}, 1, 1")
            k(f"v_add_u32 v{t2}, s96, v{t2}")
            k(f"v_xor_b32 v{t2}, v{t2}, v{t1}")
            k(f"v_lshlrev_b32 v{t2}, 4, v{t2}")
            k(f"v_mul_u32_u24 v{t0}, {C*16}, v{t0}")
            k(f"v_and_b32 v{t1}, 1, v{v_lane}")
            k(f"v_lshlrev_b32 v{t1}, 3, v{t1}")
            k(f"v_add3_u32 v{v}, v{t0}, v{t1}, v{t2}")
            k(f"v_add_u32 v{v}, {p.lds}, v{v}")

def frag_reads_ks_blk(p, b, nb, kk, dst):
    C = 2*p.nblk
    off = kk*32*C*16
    return [f"ds_read_b64_tr_b16 v[{dst}:{dst+1}], v{p.vbase[b]} offset:{off}",
            f"ds_read_b64_tr_b16 v[{dst+2}:{dst+3}], v{p.vbase[nb+b]} offset:{off}"]

def frag_reads(p, blk, kk, dst):
    if p.flavor == 'KC':
        return [f"ds_read_b128 v[{dst}:{dst+3}], v{p.vbase[kk]} offset:{2048*blk}"]
    C = 2*p.nblk
    off = kk*32*C*16 + 32*blk
    return [f"ds_read_b64_tr_b16 v[{dst}:{dst+1}], v{p.vbase[0]} offset:{off}",
            f"ds_read_b64_tr_b16 v[{dst+2}:{dst+3}], v{p.vbase[1]} offset:{off}"]
```

```python
from asmlib import *
from gemmlib import *

NW = 8
def gen_gemm1():
    k = K("gemm1_kernel")
    V_LANE = 1; VT = (2, 3, 4)
    xn  = Piece("xn", 'KC', 16, 4,  2048, "s44")
    wg  = Piece("wg", 'KS', 7,  8,  7168, "s45", rot=0)
    wu  = Piece("wu", 'KS', 7,  12, 7168, "s46", rot=2)
    bre = Piece("bre",'KC', 2,  16, 2048, "s47", rot=0)
    bim = Piece("bim",'KC', 2,  20, 2048, "s48", rot=4)
    pieces = [xn, wg, wu, bre, bim]
    off = 0
    for p in pieces:
        p.lds = off; off += p.bytes
    STAGE = off
    v = 5
    for p in pieces:
        ns = (p.ndma + NW - 1)//NW
        p.vslots = list(range(v, v+ns)); v += ns
    for p in pieces:
        p.vbase = [v, v+1]; v += 2
    v = (v + 3) & ~3
    VB = v; v += 16
    NSLOT = 10
    VA = v; v += 4*NSLOT
    VEND = v
    swk = {0: "s40", 2: "s41", 4: "s42"}
    swk1024 = {0: "s52", 2: "s53", 4: "s54"}
    k(f"""
    s_cmp_ge_u32 s2, 256
    s_cbranch_scc1 {k.name}_end
    s_load_dwordx2 s[60:61], s[0:1], {ARG['ws']}
    s_load_dwordx2 s[62:63], s[0:1], {ARG['wg']}
    s_load_dwordx2 s[64:65], s[0:1], {ARG['wu']}
    s_load_dwordx2 s[66:67], s[0:1], {ARG['bre']}
    s_load_dwordx2 s[68:69], s[0:1], {ARG['bim']}
    v_and_b32 v{V_LANE}, 63, v0
    v_lshrrev_b32 v2, 6, v0
    s_nop 0
    v_readfirstlane_b32 s40, v2
    s_nop 3
    s_add_u32 s41, s40, 6
    s_and_b32 s41, s41, 7
    s_add_u32 s42, s40, 4
    s_and_b32 s42, s42, 7
    s_lshl_b32 s52, s40, 10
    s_lshl_b32 s53, s41, 10
    s_lshl_b32 s54, s42, 10
    s_and_b32 s56, s2, 7
    s_lshl_b32 s56, s56, 2
    s_lshr_b32 s57, s2, 3
    s_and_b32 s57, s57, 3
    s_add_u32 s56, s56, s57
    s_lshr_b32 s57, s2, 5
    s_lshl_b32 s44, s57, 19
    s_mul_i32 s45, s56, 224
    s_mov_b32 s46, s45
    s_lshl_b32 s47, s56, 16
    s_mov_b32 s48, s47
    s_waitcnt lgkmcnt(0)
    """)
    def srd(d, lo, hi, nbytes, add=0):
        if add:
            k(f"s_add_u32 s{d}, s{lo}, {add}\ns_addc_u32 s{d+1}, s{hi}, 0")
        else:
            k(f"s_mov_b32 s{d}, s{lo}\ns_mov_b32 s{d+1}, s{hi}")
        k(f"s_mov_b32 s{d+2}, {nbytes}\ns_mov_b32 s{d+3}, 0x20000")
    srd(4, 60, 61, 0x400000, WS_XN)
    srd(8, 62, 63, 1024*3584*2)
    srd(12, 64, 65, 1024*3584*2)
    srd(16, 66, 67, 0x200000)
    srd(20, 68, 69, 0x200000)
    srd(24, 60, 61, 2048*3584*2, WS_ACT)
    srd(28, 60, 61, 0x800000, WS_BURE)
    srd(32, 60, 61, 0x800000, WS_BUIM)
    for p in pieces:
        emit_dma_setup(k, p, NW, VT, swk[p.rot], V_LANE)
    k("s_lshl_b32 s58, s40, 12")
    for p in pieces:
        emit_read_setup(k, p, V_LANE, VT, extra_rows="s58" if p is xn else None)
    NACC = 18*2*4
    for i in range(NACC):
        k(f"v_accvgpr_write_b32 a{i}, 0")
    def issue(stage):
        for p in pieces:
            emit_dma_issue(k, p, NW, swk1024[p.rot], stage*STAGE)
    def advance():
        for p in pieces:
            k(f"s_add_u32 {p.soff}, {p.soff}, {p.kadv}")
    ablk = [(wg, i) for i in range(7)] + [(wu, i) for i in range(7)] + [(bre, 0), (bim, 0), (bre, 1), (bim, 1)]
    def compute():
        reads = []
        groups = []
        slot = 0
        for kk in range(2):
            bidx = []
            for j in range(2):
                dst = VB + 8*kk + 4*j
                reads.append((frag_reads(xn, j, kk, dst), dst)); bidx.append(len(reads)-1)
            for i, (p, b) in enumerate(ablk):
                dst = VA + 4*(slot % NSLOT); slot += 1
                reads.append((frag_reads(p, b, kk, dst), dst))
                ri = len(reads)-1
                mf = [f"v_mfma_f32_16x16x32_bf16 a[{4*(2*i+j)}:{4*(2*i+j)+3}], v[{dst}:{dst+3}], v[{VB+8*kk+4*j}:{VB+8*kk+4*j+3}], a[{4*(2*i+j)}:{4*(2*i+j)+3}]" for j in range(2)]
                groups.append((max(ri, *bidx), mf, ri))
        issued = 0
        ninstr = [0]
        cum = []
        c = 0
        for r, _ in reads:
            c += len(r); cum.append(c)
        done_groups = 0
        for gi, (need, mf, ri) in enumerate(groups):
            while issued < len(reads):
                dst = reads[issued][1]
                if issued > need:
                    ok = True
                    for g2 in range(gi, len(groups)):
                        pass
                    for (n2, m2, r2) in groups[gi:]:
                        if r2 < issued and reads[r2][1] == dst:
                            ok = False
                    if cum[issued] - cum[need] > 12:
                        ok = False
                    if not ok:
                        break
                for ins in reads[issued][0]:
                    k(ins)
                issued += 1
            k(f"s_waitcnt lgkmcnt({cum[issued-1]-cum[need]})")
            for m in mf:
                k(m)
    def toggle(sign):
        for p in pieces:
            for vb in p.vbase:
                k(f"v_add_u32 v{vb}, {'s50' if sign > 0 else 's51'}, v{vb}")
    k(f"s_mov_b32 s50, {STAGE}\ns_sub_u32 s51, 0, s50")
    issue(0)
    k("s_mov_b32 s59, 0")
    loop = k.label("loop")
    k(f"{loop}:")
    k("s_waitcnt vmcnt(0)\ns_barrier")
    advance(); issue(1)
    compute(); toggle(+1)
    k("s_waitcnt vmcnt(0)\ns_barrier")
    skip = k.label("noissue")
    k(f"s_cmp_ge_u32 s59, 7\ns_cbranch_scc1 {skip}")
    advance(); issue(0)
    k(f"{skip}:")
    compute(); toggle(-1)
    k(f"s_add_u32 s59, s59, 1\ns_cmp_lt_u32 s59, 8\ns_cbranch_scc1 {loop}")
    k("s_nop 7\ns_nop 7")
    k(f"""
    v_and_b32 v2, 15, v{V_LANE}
    s_lshl_b32 s58, s57, 8
    s_lshl_b32 s59, s40, 5
    s_add_u32 s58, s58, s59
    v_add_u32 v2, s58, v2
    v_lshrrev_b32 v3, 4, v{V_LANE}
    v_lshlrev_b32 v3, 2, v3
    """)
    k(f"""
    s_mov_b32 s58, 7168
    v_mul_lo_u32 v5, v2, s58
    s_mul_i32 s59, s56, 224
    v_lshlrev_b32 v6, 1, v3
    v_add3_u32 v5, v5, v6, s59
    v_lshlrev_b32 v7, 12, v2
    s_lshl_b32 s59, s56, 7
    v_lshlrev_b32 v6, 2, v3
    v_add3_u32 v7, v7, v6, s59
    """)
    E = 8
    for i in range(7):
        for j in range(2):
            ag = 4*(2*i+j); au = 4*(2*(7+i)+j)
            for r in range(4):
                k(f"v_accvgpr_read_b32 v{E+r}, a{ag+r}")
                k(f"v_accvgpr_read_b32 v{E+4+r}, a{au+r}")
            k(f"v_cvt_pk_bf16_f32 v{E+8}, v{E}, v{E+1}\nv_cvt_pk_bf16_f32 v{E+9}, v{E+2}, v{E+3}")
            k(f"v_cvt_pk_bf16_f32 v{E+10}, v{E+4}, v{E+5}\nv_cvt_pk_bf16_f32 v{E+11}, v{E+6}, v{E+7}")
            for r in range(4):
                src = E+8 + r//2
                sh = f"v_lshlrev_b32 v{E+r}, 16, v{src}" if r % 2 == 0 else f"v_and_b32 v{E+r}, 0xffff0000, v{src}"
                k(sh)
                src = E+10 + r//2
                sh = f"v_lshlrev_b32 v{E+4+r}, 16, v{src}" if r % 2 == 0 else f"v_and_b32 v{E+4+r}, 0xffff0000, v{src}"
                k(sh)
            for r in range(4):
                g = E+r
                k(f"""
                v_mul_f32 v{E+12}, v{g}, v{g}
                v_mul_f32 v{E+13}, 0x3d372713, v{E+12}
                v_fma_f32 v{E+13}, v{E+13}, v{g}, v{g}
                v_mul_f32 v{E+13}, 0x40135761, v{E+13}
                v_exp_f32 v{E+13}, v{E+13}
                s_nop 0
                v_add_f32 v{E+13}, 1.0, v{E+13}
                v_rcp_f32 v{E+13}, v{E+13}
                s_nop 0
                v_fma_f32 v{E+13}, v{E+13}, -2.0, 1.0
                v_add_f32 v{E+13}, 1.0, v{E+13}
                v_mul_f32 v{E+12}, 0.5, v{g}
                v_mul_f32 v{g}, v{E+12}, v{E+13}
                """)
            k(f"v_cvt_pk_bf16_f32 v{E+8}, v{E}, v{E+1}\nv_cvt_pk_bf16_f32 v{E+9}, v{E+2}, v{E+3}")
            for r in range(4):
                src = E+8 + r//2
                sh = f"v_lshlrev_b32 v{E+r}, 16, v{src}" if r % 2 == 0 else f"v_and_b32 v{E+r}, 0xffff0000, v{src}"
                k(sh)
                k(f"v_mul_f32 v{E+r}, v{E+r}, v{E+4+r}")
            k(f"v_cvt_pk_bf16_f32 v{E+14}, v{E}, v{E+1}\nv_cvt_pk_bf16_f32 v{E+15}, v{E+2}, v{E+3}")
            k(f"buffer_store_dwordx2 v[{E+14}:{E+15}], v5, s[24:27], 0 offen offset:{32*i}" if j == 0 else
              f"v_add_u32 v6, {16*7168}, v5\nbuffer_store_dwordx2 v[{E+14}:{E+15}], v6, s[24:27], 0 offen offset:{32*i}")
            k("s_nop 1")
    for q in range(2):
        for c, srdn in ((0, 28), (1, 32)):
            i = 14 + 2*q + c
            for j in range(2):
                a = 4*(2*i+j)
                for r in range(4):
                    k(f"v_accvgpr_read_b32 v{E+r}, a{a+r}")
                if j == 0:
                    k(f"buffer_store_dwordx4 v[{E}:{E+3}], v7, s[{srdn}:{srdn+3}], 0 offen offset:{64*q}")
                else:
                    k(f"v_add_u32 v6, {16*4096}, v7\nbuffer_store_dwordx4 v[{E}:{E+3}], v6, s[{srdn}:{srdn+3}], 0 offen offset:{64*q}")
                k("s_nop 1")
    k(f"{k.name}_end:")
    accum = (VEND + 3) & ~3
    return kernel_text(k, accum + NACC, 102, accum), 2*STAGE
```

```python
from asmlib import *
from gemmlib import *

NW = 8
def gen_gemm2():
    k = K("gemm2_kernel")
    V_LANE = 1; VT = (2, 3, 4)
    TMB, TNB = 4, 8
    cA  = Piece("cA", 'KC', TMB, 4, 2048, "s44")
    hB  = Piece("hB", 'KC', TNB, 12, 4096, "s45")
    wdA = Piece("wd", 'KS', TMB, 16, 2048, "s46")
    acB = Piece("ac", 'KC', TNB, 20, 7168, "s47")
    STAGE = cA.bytes + hB.bytes
    cA.lds = 0; hB.lds = cA.bytes; wdA.lds = 0; acB.lds = cA.bytes
    v = 5
    for p in (cA, hB, wdA, acB):
        ns = (p.ndma + NW - 1)//NW
        p.vslots = list(range(v, v+ns)); v += ns
    cA.vbase = [v, v+1]; v += 2
    hB.vbase = [v, v+1]; v += 2
    acB.vbase = hB.vbase
    wdA.vbase = list(range(v, v+4)); v += 4
    v = (v + 3) & ~3
    VF = v; v += 4*8
    VEND = v
    k(f"""
    s_cmp_ge_u32 s2, 256
    s_cbranch_scc1 {k.name}_end
    s_load_dwordx2 s[60:61], s[0:1], {ARG['ws']}
    s_load_dwordx2 s[62:63], s[0:1], {ARG['cre']}
    s_load_dwordx2 s[64:65], s[0:1], {ARG['cim']}
    s_load_dwordx2 s[66:67], s[0:1], {ARG['wd']}
    s_load_dwordx2 s[68:69], s[0:1], {ARG['x']}
    s_load_dwordx2 s[70:71], s[0:1], {ARG['dskip']}
    s_load_dwordx2 s[72:73], s[0:1], {ARG['out']}
    v_and_b32 v{V_LANE}, 63, v0
    v_lshrrev_b32 v2, 6, v0
    s_nop 0
    v_readfirstlane_b32 s40, v2
    s_nop 3
    s_lshl_b32 s52, s40, 10
    s_and_b32 s56, s2, 15
    s_lshr_b32 s57, s2, 4
    s_lshl_b32 s44, s56, 17
    s_lshl_b32 s45, s57, 19
    s_lshl_b32 s46, s56, 7
    s_mul_i32 s47, s57, {128*7168}
    s_and_b32 s41, s40, 1
    s_lshl_b32 s41, s41, 1
    s_lshr_b32 s42, s40, 1
    s_lshl_b32 s42, s42, 1
    s_waitcnt lgkmcnt(0)
    """)
    def srd(d, lo, hi, nbytes, add=0):
        if add:
            k(f"s_add_u32 s{d}, s{lo}, {add}\ns_addc_u32 s{d+1}, s{hi}, 0")
        else:
            k(f"s_mov_b32 s{d}, s{lo}\ns_mov_b32 s{d+1}, s{hi}")
        k(f"s_mov_b32 s{d+2}, {nbytes}\ns_mov_b32 s{d+3}, 0x20000")
    srd(4, 62, 63, 0x200000)
    srd(8, 64, 65, 0x200000)
    srd(12, 60, 61, 0x800000, WS_H)
    srd(16, 66, 67, 3584*1024*2)
    srd(20, 60, 61, 2048*3584*2, WS_ACT)
    srd(24, 68, 69, 0x400000)
    srd(28, 60, 61, 0x400000, WS_XN)
    srd(32, 70, 71, 2048)
    srd(36, 72, 73, 0x800000)
    for p in (cA, hB, wdA, acB):
        emit_dma_setup(k, p, NW, VT, "s40", V_LANE)
    k("s_lshl_b32 s58, s41, 11\ns_lshl_b32 s59, s42, 11")
    emit_read_setup(k, cA, V_LANE, VT, extra_rows="s58")
    emit_read_setup(k, hB, V_LANE, VT, extra_rows="s59")
    emit_read_setup_ks_blk(k, wdA, V_LANE, VT, "s41", 2)
    for i in range(32):
        k(f"v_accvgpr_write_b32 a{i}, 0")
    k(f"s_mov_b32 s50, {STAGE}\ns_sub_u32 s51, 0, s50")
    def phase(A, B, ntiles, acc0, ks):
        def issue(stage):
            for p in (A, B):
                emit_dma_issue(k, p, NW, "s52", stage*STAGE)
        def advance():
            for p in (A, B):
                k(f"s_add_u32 {p.soff}, {p.soff}, {p.kadv}")
        def compute():
            for kk in range(2):
                for b in range(2):
                    for ins in (frag_reads_ks_blk(A, b, 2, kk, VF+16*kk+4*b) if ks else frag_reads(A, b, kk, VF+16*kk+4*b)):
                        k(ins)
                for b in range(2):
                    for ins in frag_reads(B, b, kk, VF+16*kk+8+4*b):
                        k(ins)
            n1 = 4 if not ks else 6
            for kk in range(2):
                k(f"s_waitcnt lgkmcnt({n1 if kk == 0 else 0})")
                for i in range(2):
                    for j in range(2):
                        a = acc0 + 4*(2*i+j)
                        k(f"v_mfma_f32_16x16x32_bf16 a[{a}:{a+3}], v[{VF+16*kk+4*i}:{VF+16*kk+4*i+3}], v[{VF+16*kk+8+4*j}:{VF+16*kk+8+4*j+3}], a[{a}:{a+3}]")
        def toggle(sign):
            for vb in A.vbase + B.vbase:
                k(f"v_add_u32 v{vb}, {'s50' if sign > 0 else 's51'}, v{vb}")
        issue(0)
        k("s_mov_b32 s59, 0")
        loop = k.label("loop")
        k(f"{loop}:")
        k("s_waitcnt vmcnt(0)\ns_barrier")
        advance(); issue(1)
        compute(); toggle(+1)
        k("s_waitcnt vmcnt(0)\ns_barrier")
        skip = k.label("noissue")
        k(f"s_cmp_ge_u32 s59, {ntiles//2-1}\ns_cbranch_scc1 {skip}")
        advance(); issue(0)
        k(f"{skip}:")
        compute(); toggle(-1)
        k(f"s_add_u32 s59, s59, 1\ns_cmp_lt_u32 s59, {ntiles//2}\ns_cbranch_scc1 {loop}")
        k("s_barrier")
    phase(cA, hB, 16, 0, False)
    k("s_add_u32 s45, s45, 128")
    k("s_lshl_b32 s44, s56, 17")
    cA.srd = 8
    phase(cA, hB, 16, 0, False)
    phase(wdA, acB, 56, 16, True)
    k("s_nop 7\ns_nop 7")
    k(f"""
    v_and_b32 v2, 15, v{V_LANE}
    s_lshl_b32 s58, s57, 7
    s_lshl_b32 s59, s42, 4
    s_add_u32 s58, s58, s59
    v_add_u32 v2, s58, v2
    v_lshrrev_b32 v3, 4, v{V_LANE}
    v_lshlrev_b32 v3, 2, v3
    s_lshl_b32 s58, s56, 6
    s_lshl_b32 s59, s41, 4
    s_add_u32 s58, s58, s59
    v_add_u32 v3, s58, v3
    v_lshlrev_b32 v5, 11, v2
    v_lshlrev_b32 v6, 1, v3
    v_add_u32 v5, v5, v6
    v_lshlrev_b32 v7, 1, v5
    """)
    E = 8
    for i in range(2):
        for j in range(2):
            o16 = 32*i + 16*2048*j
            k(f"buffer_load_dwordx2 v[{E}:{E+1}], v5, s[24:27], 0 offen offset:{32*i}" if j == 0 else
              f"v_add_u32 v4, {16*2048}, v5\nbuffer_load_dwordx2 v[{E}:{E+1}], v4, s[24:27], 0 offen offset:{32*i}")
            k(f"buffer_load_dwordx2 v[{E+2}:{E+3}], v{5 if j == 0 else 4}, s[28:31], 0 offen offset:{32*i}")
            k(f"buffer_load_dwordx2 v[{E+4}:{E+5}], v6, s[32:35], 0 offen offset:{32*i}")
            aS = 4*(2*i+j); aF = 16 + aS
            for r in range(4):
                k(f"v_accvgpr_read_b32 v{E+8+r}, a{aS+r}")
                k(f"v_accvgpr_read_b32 v{E+12+r}, a{aF+r}")
            k("s_waitcnt vmcnt(0)")
            for r in range(4):
                w = r//2
                ext = (lambda d, s_: f"v_lshlrev_b32 v{d}, 16, v{s_}") if r % 2 == 0 else (lambda d, s_: f"v_and_b32 v{d}, 0xffff0000, v{s_}")
                k(ext(E+16, E+w))
                k(ext(E+17, E+2+w))
                k(ext(E+18, E+4+w))
                k(f"""
                v_mul_f32 v{E+17}, v{E+17}, v{E+18}
                v_cvt_pk_bf16_f32 v{E+17}, v{E+17}, v{E+17}
                v_lshlrev_b32 v{E+17}, 16, v{E+17}
                v_fma_f32 v{E+17}, v{E+8+r}, 2.0, v{E+17}
                v_cvt_pk_bf16_f32 v{E+18}, v{E+12+r}, v{E+12+r}
                v_lshlrev_b32 v{E+18}, 16, v{E+18}
                v_mul_f32 v{E+19}, 0xbfb8aa3b, v{E+18}
                v_exp_f32 v{E+19}, v{E+19}
                s_nop 0
                v_add_f32 v{E+19}, 1.0, v{E+19}
                v_rcp_f32 v{E+19}, v{E+19}
                s_nop 0
                v_mul_f32 v{E+18}, v{E+18}, v{E+19}
                v_cvt_pk_bf16_f32 v{E+18}, v{E+18}, v{E+18}
                v_lshlrev_b32 v{E+18}, 16, v{E+18}
                v_fma_f32 v{E+20+r}, v{E+17}, v{E+18}, v{E+16}
                """)
            k(f"buffer_store_dwordx4 v[{E+20}:{E+23}], v7, s[36:39], 0 offen offset:{64*i}" if j == 0 else
              f"v_add_u32 v4, {16*4096}, v7\nbuffer_store_dwordx4 v[{E+20}:{E+23}], v4, s[36:39], 0 offen offset:{64*i}")
            k("s_nop 1")
    k(f"{k.name}_end:")
    accum = (max(VEND, 40) + 3) & ~3
    return kernel_text(k, accum + 32, 102, accum), 2*STAGE
```

```python
from asmlib import *
def gen_ln():
    k = K("ln_kernel")
    k(f"""
    s_cmp_ge_u32 s2, 512
    s_cbranch_scc1 {k.name}_end
    s_load_dwordx2 s[4:5], s[0:1], {ARG['x']}
    s_load_dwordx2 s[6:7], s[0:1], {ARG['ws']}
    v_lshrrev_b32 v1, 6, v0
    v_and_b32 v2, 63, v0
    s_nop 0
    v_readfirstlane_b32 s3, v1
    s_lshl_b32 s2, s2, 2
    s_nop 2
    s_add_u32 s3, s3, s2
    s_lshl_b32 s3, s3, 11
    v_lshlrev_b32 v3, 4, v2
    v_add_u32 v3, s3, v3
    s_waitcnt lgkmcnt(0)
    s_mov_b32 s8, s4
    s_mov_b32 s9, s5
    s_mov_b32 s10, 0x400000
    s_mov_b32 s11, 0x20000
    s_add_u32 s12, s6, {WS_XN}
    s_addc_u32 s13, s7, 0
    s_mov_b32 s14, 0x400000
    s_mov_b32 s15, 0x20000
    buffer_load_dwordx4 v[4:7], v3, s[8:11], 0 offen
    buffer_load_dwordx4 v[8:11], v3, s[8:11], 0 offen offset:1024
    s_waitcnt vmcnt(0)
    """)
    for i in range(8):
        k(f"v_lshlrev_b32 v{16+2*i}, 16, v{4+i}")
        k(f"v_and_b32 v{17+2*i}, 0xffff0000, v{4+i}")
    def wave_sum(src, dst):
        k(f"""
        v_add_f32_dpp v{dst}, v{src}, v{src} row_shr:1 row_mask:0xf bank_mask:0xf bound_ctrl:0
        s_nop 1
        v_add_f32_dpp v{dst}, v{dst}, v{dst} row_shr:2 row_mask:0xf bank_mask:0xf bound_ctrl:0
        s_nop 1
        v_add_f32_dpp v{dst}, v{dst}, v{dst} row_shr:4 row_mask:0xf bank_mask:0xf bound_ctrl:0
        s_nop 1
        v_add_f32_dpp v{dst}, v{dst}, v{dst} row_shr:8 row_mask:0xf bank_mask:0xf bound_ctrl:0
        s_nop 1
        v_readlane_b32 s20, v{dst}, 15
        v_readlane_b32 s21, v{dst}, 31
        v_readlane_b32 s22, v{dst}, 47
        v_readlane_b32 s23, v{dst}, 63
        s_nop 3
        v_mov_b32 v{dst}, s20
        v_add_f32 v{dst}, s21, v{dst}
        v_add_f32 v{dst}, s22, v{dst}
        v_add_f32 v{dst}, s23, v{dst}
        """)
    k("v_add_f32 v12, v16, v17")
    for i in range(2, 16):
        k(f"v_add_f32 v12, v12, v{16+i}")
    k("s_nop 1")
    wave_sum(12, 13)
    k("""
    v_mul_f32 v13, 0x3a800000, v13
    """)
    k("v_sub_f32 v14, v16, v13")
    k("v_mul_f32 v12, v14, v14")
    for i in range(1, 16):
        k(f"v_sub_f32 v14, v{16+i}, v13")
        k("v_fmac_f32 v12, v14, v14")
    k("s_nop 1")
    wave_sum(12, 15)
    k("""
    v_mul_f32 v15, 0x3a800000, v15
    v_cvt_pk_bf16_f32 v40, v13, v15
    v_lshlrev_b32 v13, 16, v40
    v_and_b32 v15, 0xffff0000, v40
    v_add_f32 v15, 0x3727c5ac, v15
    v_cvt_pk_bf16_f32 v40, v15, v15
    v_lshlrev_b32 v15, 16, v40
    v_sqrt_f32 v15, v15
    s_nop 0
    v_cvt_pk_bf16_f32 v40, v15, v15
    v_lshlrev_b32 v15, 16, v40
    """)
    k("v_rcp_f32 v41, v15")
    k("s_nop 0")
    for i in range(16):
        r = 16 + i
        k(f"v_sub_f32 v{r}, v{r}, v13")
        k(f"v_cvt_pk_bf16_f32 v40, v{r}, v{r}")
        k(f"v_lshlrev_b32 v{r}, 16, v40")
        k(f"v_mul_f32 v42, v{r}, v41")
        k(f"v_fma_f32 v43, -v42, v15, v{r}")
        k(f"v_fma_f32 v{r}, v43, v41, v42")
    for i in range(8):
        k(f"v_cvt_pk_bf16_f32 v{4+i}, v{16+2*i}, v{17+2*i}")
    k(f"""
    buffer_store_dwordx4 v[4:7], v3, s[12:15], 0 offen
    buffer_store_dwordx4 v[8:11], v3, s[12:15], 0 offen offset:1024
    {k.name}_end:
    """)
    return kernel_text(k, 48, 32, 48)
```

```python
from asmlib import *
def gen_scan():
    k = K("scan_kernel")
    T = 64
    RE = 32; IM = 32 + T
    k(f"""
    s_cmp_ge_u32 s2, 64
    s_cbranch_scc1 {k.name}_end
    s_load_dwordx2 s[4:5], s[0:1], {ARG['lre']}
    s_load_dwordx2 s[6:7], s[0:1], {ARG['lim']}
    s_load_dwordx2 s[8:9], s[0:1], {ARG['logdt']}
    s_load_dwordx2 s[10:11], s[0:1], {ARG['ws']}
    v_and_b32 v1, 15, v0
    v_lshrrev_b32 v2, 4, v0
    s_lshl_b32 s3, s2, 4
    v_add_u32 v3, s3, v1
    v_lshlrev_b32 v4, 1, v3
    s_waitcnt lgkmcnt(0)
    """)
    def srd(d, lo, hi, nbytes, add=0):
        if add:
            k(f"s_add_u32 s{d}, s{lo}, {add}\ns_addc_u32 s{d+1}, s{hi}, 0")
        else:
            k(f"s_mov_b32 s{d}, s{lo}\ns_mov_b32 s{d+1}, s{hi}")
        k(f"s_mov_b32 s{d+2}, {nbytes}\ns_mov_b32 s{d+3}, 0x20000")
    srd(12, 4, 5, 2048); srd(16, 6, 7, 2048); srd(20, 8, 9, 2048)
    srd(24, 10, 11, 0x800000, WS_BURE); srd(28, 10, 11, 0x800000, WS_BUIM); srd(32, 10, 11, 0x800000, WS_H)
    k(f"""
    buffer_load_ushort v5, v4, s[12:15], 0 offen
    buffer_load_ushort v6, v4, s[16:19], 0 offen
    buffer_load_ushort v7, v4, s[20:23], 0 offen
    v_lshlrev_b32 v8, 18, v2
    v_lshlrev_b32 v9, 2, v3
    v_add_u32 v8, v8, v9
    """)
    for i in range(T):
        k(f"s_mov_b32 s40, {i*4096}")
        k(f"buffer_load_dword v{RE+i}, v8, s[24:27], s40 offen")
        k(f"buffer_load_dword v{IM+i}, v8, s[28:31], s40 offen")
    k(f"""
    s_waitcnt vmcnt(63)
    v_lshlrev_b32 v5, 16, v5
    v_lshlrev_b32 v6, 16, v6
    v_lshlrev_b32 v7, 16, v7
    v_mul_f32 v7, 0x3fb8aa3b, v7
    v_exp_f32 v7, v7
    s_nop 0
    v_cvt_pk_bf16_f32 v7, v7, v7
    v_lshlrev_b32 v7, 16, v7
    v_mul_f32 v9, v7, v5
    v_mul_f32 v10, v7, v6
    v_mul_f32 v9, 0x3fb8aa3b, v9
    v_exp_f32 v9, v9
    v_mul_f32 v10, 0.15915494, v10
    v_cos_f32 v11, v10
    v_sin_f32 v12, v10
    s_nop 0
    v_mul_f32 v11, v9, v11
    v_mul_f32 v12, v9, v12
    v_add_f32 v13, -1.0, v11
    v_mul_f32 v14, v5, v5
    v_fmac_f32 v14, v6, v6
    v_rcp_f32 v14, v14
    v_mul_f32 v15, v13, v5
    v_fmac_f32 v15, v12, v6
    v_mul_f32 v16, v12, v5
    v_fma_f32 v16, -v13, v6, v16
    v_mul_f32 v15, v15, v14
    v_mul_f32 v16, v16, v14
    """)
    k("v_mov_b32 v17, 0\nv_mov_b32 v18, 0")
    for i in range(T):
        k(f"s_waitcnt vmcnt({min(63, 2*(T-1-i))})")
        k(f"""
        v_mul_f32 v19, v15, v{RE+i}
        v_mul_f32 v20, v15, v{IM+i}
        v_fma_f32 v19, -v16, v{IM+i}, v19
        v_fmac_f32 v20, v16, v{RE+i}
        v_fmac_f32 v19, v11, v17
        v_fmac_f32 v20, v11, v18
        v_fma_f32 v19, -v12, v18, v19
        v_fmac_f32 v20, v12, v17
        v_mov_b32 v17, v19
        v_mov_b32 v18, v20
        v_mov_b32 v{RE+i}, v19
        v_mov_b32 v{IM+i}, v20
        """)
    k(f"""
    v_lshlrev_b32 v21, 3, v0
    v_mov_b32 v28, v17
    v_mov_b32 v29, v18
    ds_write_b64 v21, v[28:29]
    v_mov_b32 v22, v11
    v_mov_b32 v23, v12
    """)
    for _ in range(6):
        k("""
        v_mul_f32 v24, v22, v22
        v_mul_f32 v25, v22, v23
        v_fma_f32 v22, -v23, v23, v24
        v_add_f32 v23, v25, v25
        """)
    k(f"""
    s_waitcnt lgkmcnt(0)
    s_barrier
    v_lshlrev_b32 v21, 3, v1
    v_mov_b32 v17, 0
    v_mov_b32 v18, 0
    """)
    for j in range(31):
        k(f"ds_read_b64 v[{160+2*j}:{161+2*j}], v21 offset:{128*j}")
    for j in range(31):
        k(f"""
        s_waitcnt lgkmcnt({min(15,30-j)})
        v_cmp_lt_u32 vcc, {j}, v2
        v_mul_f32 v24, v22, v17
        v_mul_f32 v25, v22, v18
        v_fma_f32 v24, -v23, v18, v24
        v_fmac_f32 v25, v23, v17
        v_add_f32 v24, v24, v{160+2*j}
        v_add_f32 v25, v25, v{161+2*j}
        v_cndmask_b32 v17, v17, v24, vcc
        v_cndmask_b32 v18, v18, v25, vcc
        """)
    k(f"""
    v_lshlrev_b32 v8, 18, v2
    v_lshlrev_b32 v9, 1, v3
    v_add_u32 v8, v8, v9
    """)
    for i in range(T):
        k(f"""
        v_mul_f32 v24, v11, v17
        v_mul_f32 v25, v11, v18
        v_fma_f32 v24, -v12, v18, v24
        v_fmac_f32 v25, v12, v17
        v_mov_b32 v17, v24
        v_mov_b32 v18, v25
        v_add_f32 v{RE+i}, v{RE+i}, v24
        v_add_f32 v{IM+i}, v{IM+i}, v25
        v_cvt_pk_bf16_f32 v26, v{RE+i}, -v{IM+i}
        s_mov_b32 s40, {i*4096}
        buffer_store_short v26, v8, s[32:35], s40 offen
        buffer_store_short_d16_hi v26, v8, s[32:35], s40 offen offset:2048
        """)
    k(f"{k.name}_end:")
    return kernel_text(k, 224, 48, 224)
```

```python
import sys
from asmlib import *
from k_ln import gen_ln
from k_gemm1 import gen_gemm1
from k_scan import gen_scan
from k_gemm2 import gen_gemm2
hdr = open("recurrent_scan__ssm_conv_s5__geglu_ffn__prompt.s.ref").read()
cm = [l for l in hdr.split("\n") if l.startswith(";") and "@launch" not in l]
g1, lds1 = gen_gemm1()
g2, lds2 = gen_gemm2()
launches = ["; @launch kernel=ln_kernel grid=(512,1,1) block=(256,1,1) lds=0",
            f"; @launch kernel=gemm1_kernel grid=(256,1,1) block=(512,1,1) lds={lds1}",
            "; @launch kernel=scan_kernel grid=(64,1,1) block=(512,1,1) lds=4096",
            f"; @launch kernel=gemm2_kernel grid=(256,1,1) block=(512,1,1) lds={lds2}"]
body = [gen_ln(), g1, gen_scan(), g2]
txt = "\n".join(cm[:-2]) + "\n" + "\n".join(launches) + '\n.amdgcn_target "amdgcn-amd-amdhsa--gfx950"\n' + "\n".join(body)
open(sys.argv[1] if len(sys.argv) > 1 else "out.s", "w").write(txt)
```

```python
from asmlib import *
from gemmlib import *

NW = 8
def gen_gemm1(nodma=False, nomfma=False, noread=False, noepi=False, noloop=False):
    k = K("gemm1_kernel")
    V_LANE = 1; VT = (2, 3, 4)
    xn  = Piece("xn", 'KC', 16, 4,  2048, "s44")
    wg  = Piece("wg", 'KS', 7,  8,  7168, "s45", rot=0)
    wu  = Piece("wu", 'KS', 7,  12, 7168, "s46", rot=2)
    bre = Piece("bre",'KC', 2,  16, 2048, "s47", rot=0)
    bim = Piece("bim",'KC', 2,  20, 2048, "s48", rot=4)
    pieces = [xn, wg, wu, bre, bim]
    off = 0
    for p in pieces:
        p.lds = off; off += p.bytes
    STAGE = off
    v = 5
    for p in pieces:
        ns = (p.ndma + NW - 1)//NW
        p.vslots = list(range(v, v+ns)); v += ns
    for p in pieces:
        p.vbase = [v, v+1]; v += 2
    v = (v + 3) & ~3
    VB = v; v += 16
    NSLOT = 10
    VA = v; v += 4*NSLOT
    VEND = v
    swk = {0: "s40", 2: "s41", 4: "s42"}
    swk1024 = {0: "s52", 2: "s53", 4: "s54"}
    k(f"""
    s_cmp_ge_u32 s2, 256
    s_cbranch_scc1 {k.name}_end
    s_load_dwordx2 s[60:61], s[0:1], {ARG['ws']}
    s_load_dwordx2 s[62:63], s[0:1], {ARG['wg']}
    s_load_dwordx2 s[64:65], s[0:1], {ARG['wu']}
    s_load_dwordx2 s[66:67], s[0:1], {ARG['bre']}
    s_load_dwordx2 s[68:69], s[0:1], {ARG['bim']}
    v_and_b32 v{V_LANE}, 63, v0
    v_lshrrev_b32 v2, 6, v0
    s_nop 0
    v_readfirstlane_b32 s40, v2
    s_nop 3
    s_add_u32 s41, s40, 6
    s_and_b32 s41, s41, 7
    s_add_u32 s42, s40, 4
    s_and_b32 s42, s42, 7
    s_lshl_b32 s52, s40, 10
    s_lshl_b32 s53, s41, 10
    s_lshl_b32 s54, s42, 10
    s_and_b32 s56, s2, 7
    s_lshl_b32 s56, s56, 2
    s_lshr_b32 s57, s2, 3
    s_and_b32 s57, s57, 3
    s_add_u32 s56, s56, s57
    s_lshr_b32 s57, s2, 5
    s_lshl_b32 s44, s57, 19
    s_mul_i32 s45, s56, 224
    s_mov_b32 s46, s45
    s_lshl_b32 s47, s56, 16
    s_mov_b32 s48, s47
    s_waitcnt lgkmcnt(0)
    """)
    def srd(d, lo, hi, nbytes, add=0):
        if add:
            k(f"s_add_u32 s{d}, s{lo}, {add}\ns_addc_u32 s{d+1}, s{hi}, 0")
        else:
            k(f"s_mov_b32 s{d}, s{lo}\ns_mov_b32 s{d+1}, s{hi}")
        k(f"s_mov_b32 s{d+2}, {nbytes}\ns_mov_b32 s{d+3}, 0x20000")
    srd(4, 60, 61, 0x400000, WS_XN)
    srd(8, 62, 63, 1024*3584*2)
    srd(12, 64, 65, 1024*3584*2)
    srd(16, 66, 67, 0x200000)
    srd(20, 68, 69, 0x200000)
    srd(24, 60, 61, 2048*3584*2, WS_ACT)
    srd(28, 60, 61, 0x800000, WS_BURE)
    srd(32, 60, 61, 0x800000, WS_BUIM)
    for p in pieces:
        emit_dma_setup(k, p, NW, VT, swk[p.rot], V_LANE)
    k("s_lshl_b32 s58, s40, 12")
    for p in pieces:
        emit_read_setup(k, p, V_LANE, VT, extra_rows="s58" if p is xn else None)
    NACC = 18*2*4
    for i in range(NACC):
        k(f"v_accvgpr_write_b32 a{i}, 0")
    def issue(stage):
        if nodma: return
        for p in pieces:
            emit_dma_issue(k, p, NW, swk1024[p.rot], stage*STAGE)
    def advance():
        for p in pieces:
            k(f"s_add_u32 {p.soff}, {p.soff}, {p.kadv}")
    ablk = [(wg, i) for i in range(7)] + [(wu, i) for i in range(7)] + [(bre, 0), (bim, 0), (bre, 1), (bim, 1)]
    def compute():
        reads = []
        groups = []
        slot = 0
        for kk in range(2):
            bidx = []
            for j in range(2):
                dst = VB + 8*kk + 4*j
                reads.append((frag_reads(xn, j, kk, dst), dst)); bidx.append(len(reads)-1)
            for i, (p, b) in enumerate(ablk):
                dst = VA + 4*(slot % NSLOT); slot += 1
                reads.append((frag_reads(p, b, kk, dst), dst))
                ri = len(reads)-1
                mf = [f"v_mfma_f32_16x16x32_bf16 a[{4*(2*i+j)}:{4*(2*i+j)+3}], v[{dst}:{dst+3}], v[{VB+8*kk+4*j}:{VB+8*kk+4*j+3}], a[{4*(2*i+j)}:{4*(2*i+j)+3}]" for j in range(2)]
                groups.append((max(ri, *bidx), mf, ri))
        issued = 0
        ninstr = [0]
        cum = []
        c = 0
        for r, _ in reads:
            c += len(r); cum.append(c)
        done_groups = 0
        for gi, (need, mf, ri) in enumerate(groups):
            while issued < len(reads):
                dst = reads[issued][1]
                if issued > need:
                    ok = True
                    for g2 in range(gi, len(groups)):
                        pass
                    for (n2, m2, r2) in groups[gi:]:
                        if r2 < issued and reads[r2][1] == dst:
                            ok = False
                    if cum[issued] - cum[need] > 12:
                        ok = False
                    if not ok:
                        break
                for ins in reads[issued][0]:
                    if not noread: k(ins)
                issued += 1
            k(f"s_waitcnt lgkmcnt({cum[issued-1]-cum[need]})")
            for m in mf:
                if not nomfma: k(m)
    def toggle(sign):
        for p in pieces:
            for vb in p.vbase:
                k(f"v_add_u32 v{vb}, {'s50' if sign > 0 else 's51'}, v{vb}")
    k(f"s_mov_b32 s50, {STAGE}\ns_sub_u32 s51, 0, s50")
    issue(0)
    k("s_mov_b32 s59, 0")
    if noloop: k("s_mov_b32 s59, 7")
    loop = k.label("loop")
    k(f"{loop}:")
    k("s_waitcnt vmcnt(0)\ns_barrier")
    advance(); issue(1)
    compute(); toggle(+1)
    k("s_waitcnt vmcnt(0)\ns_barrier")
    skip = k.label("noissue")
    k(f"s_cmp_ge_u32 s59, 7\ns_cbranch_scc1 {skip}")
    advance(); issue(0)
    k(f"{skip}:")
    compute(); toggle(-1)
    k(f"s_add_u32 s59, s59, 1\ns_cmp_lt_u32 s59, 8\ns_cbranch_scc1 {loop}")
    k("s_nop 7\ns_nop 7")
    if noepi: k("s_endpgm")
    epilogue(k, V_LANE)
    k(f"{k.name}_end:")
    accum = (VEND + 3) & ~3
    return kernel_text(k, accum + NACC, 102, accum), 2*STAGE

def epilogue(k, V_LANE):
    k(f"""
    v_and_b32 v2, 15, v{V_LANE}
    s_lshl_b32 s58, s57, 8
    s_lshl_b32 s59, s40, 5
    s_add_u32 s58, s58, s59
    v_add_u32 v2, s58, v2
    v_lshrrev_b32 v3, 4, v{V_LANE}
    v_lshlrev_b32 v3, 2, v3
    """)
    k(f"""
    s_mov_b32 s58, 7168
    v_mul_lo_u32 v5, v2, s58
    s_mul_i32 s59, s56, 224
    v_lshlrev_b32 v6, 1, v3
    v_add3_u32 v5, v5, v6, s59
    v_lshlrev_b32 v7, 12, v2
    s_lshl_b32 s59, s56, 7
    v_lshlrev_b32 v6, 2, v3
    v_add3_u32 v7, v7, v6, s59
    """)
    E = 8
    for i in range(7):
        for j in range(2):
            ag = 4*(2*i+j); au = 4*(2*(7+i)+j)
            for r in range(4):
                k(f"v_accvgpr_read_b32 v{E+r}, a{ag+r}")
                k(f"v_accvgpr_read_b32 v{E+4+r}, a{au+r}")
            k(f"v_cvt_pk_bf16_f32 v{E+8}, v{E}, v{E+1}\nv_cvt_pk_bf16_f32 v{E+9}, v{E+2}, v{E+3}")
            k(f"v_cvt_pk_bf16_f32 v{E+10}, v{E+4}, v{E+5}\nv_cvt_pk_bf16_f32 v{E+11}, v{E+6}, v{E+7}")
            for r in range(4):
                src = E+8 + r//2
                sh = f"v_lshlrev_b32 v{E+r}, 16, v{src}" if r % 2 == 0 else f"v_and_b32 v{E+r}, 0xffff0000, v{src}"
                k(sh)
                src = E+10 + r//2
                sh = f"v_lshlrev_b32 v{E+4+r}, 16, v{src}" if r % 2 == 0 else f"v_and_b32 v{E+4+r}, 0xffff0000, v{src}"
                k(sh)
            for r in range(4):
                g = E+r
                k(f"""
                v_mul_f32 v{E+12}, v{g}, v{g}
                v_mul_f32 v{E+13}, 0x3d372713, v{E+12}
                v_fma_f32 v{E+13}, v{E+13}, v{g}, v{g}
                v_mul_f32 v{E+13}, 0x40135761, v{E+13}
                v_exp_f32 v{E+13}, v{E+13}
                s_nop 0
                v_add_f32 v{E+13}, 1.0, v{E+13}
                v_rcp_f32 v{E+13}, v{E+13}
                s_nop 0
                v_fma_f32 v{E+13}, v{E+13}, -2.0, 1.0
                v_add_f32 v{E+13}, 1.0, v{E+13}
                v_mul_f32 v{E+12}, 0.5, v{g}
                v_mul_f32 v{g}, v{E+12}, v{E+13}
                """)
            k(f"v_cvt_pk_bf16_f32 v{E+8}, v{E}, v{E+1}\nv_cvt_pk_bf16_f32 v{E+9}, v{E+2}, v{E+3}")
            for r in range(4):
                src = E+8 + r//2
                sh = f"v_lshlrev_b32 v{E+r}, 16, v{src}" if r % 2 == 0 else f"v_and_b32 v{E+r}, 0xffff0000, v{src}"
                k(sh)
                k(f"v_mul_f32 v{E+r}, v{E+r}, v{E+4+r}")
            k(f"v_cvt_pk_bf16_f32 v{E+14}, v{E}, v{E+1}\nv_cvt_pk_bf16_f32 v{E+15}, v{E+2}, v{E+3}")
            k(f"buffer_store_dwordx2 v[{E+14}:{E+15}], v5, s[24:27], 0 offen offset:{32*i}" if j == 0 else
              f"v_add_u32 v6, {16*7168}, v5\nbuffer_store_dwordx2 v[{E+14}:{E+15}], v6, s[24:27], 0 offen offset:{32*i}")
            k("s_nop 1")
    for q in range(2):
        for c, srdn in ((0, 28), (1, 32)):
            i = 14 + 2*q + c
            for j in range(2):
                a = 4*(2*i+j)
                for r in range(4):
                    k(f"v_accvgpr_read_b32 v{E+r}, a{a+r}")
                if j == 0:
                    k(f"buffer_store_dwordx4 v[{E}:{E+3}], v7, s[{srdn}:{srdn+3}], 0 offen offset:{64*q}")
                else:
                    k(f"v_add_u32 v6, {16*4096}, v7\nbuffer_store_dwordx4 v[{E}:{E+3}], v6, s[{srdn}:{srdn+3}], 0 offen offset:{64*q}")
                k("s_nop 1")
```

```python
from asmlib import *
import gemmlib
from banksim import KS_MAP
NW = 8
class P32:
    def __init__(s, name, flavor, nblk, srd, ld, soff, rot):
        s.name, s.flavor, s.nblk, s.srd, s.ld, s.soff, s.rot = name, flavor, nblk, srd, ld, soff, rot
        s.nchunk = nblk*16*4 if flavor == 'KC' else 32*2*nblk
        s.ndma = s.nchunk//64; s.bytes = s.nchunk*16
        s.kadv = 64 if flavor == 'KC' else 32*ld

def gen_gemm1b(S=4, noepi=False):
    k = K("gemm1_kernel")
    VL = 1; t0, t1, t2 = 2, 3, 4
    xn  = P32("xn", 'KC', 16, 4,  2048, "s44", 0)
    wg  = P32("wg", 'KS', 7,  8,  7168, "s45", 0)
    wu  = P32("wu", 'KS', 7,  12, 7168, "s46", 1)
    bre = P32("bre",'KC', 2,  16, 2048, "s47", 7)
    bim = P32("bim",'KC', 2,  20, 2048, "s48", 1)
    pieces = [xn, wg, wu, bre, bim]
    off = 0
    for p in pieces:
        p.lds = off; off += p.bytes
    STAGE = off
    cnt = [0]*NW
    for p in pieces:
        for j in range(p.ndma):
            cnt[(j + p.rot) % NW] += 1
    v = 5
    for p in pieces:
        ns = (p.ndma + NW - 1)//NW
        p.vslots = list(range(v, v+ns)); v += ns
    nb = v
    for p in pieces:
        p.vbase = [v] if p.flavor == 'KC' else [v, v+1]
        v += len(p.vbase)
    VALT = v - nb; v += VALT*((S+1)//2 - 1)
    v = (v+3) & ~3
    VB = v; v += 16
    NSLOT = 9
    VA = v; v += 4*NSLOT
    VEND = max(v, 40)
    wks = {}
    k(f"""
    s_cmp_ge_u32 s2, 256
    s_cbranch_scc1 {k.name}_end
    s_load_dwordx2 s[60:61], s[0:1], {ARG['ws']}
    s_load_dwordx2 s[62:63], s[0:1], {ARG['wg']}
    s_load_dwordx2 s[64:65], s[0:1], {ARG['wu']}
    s_load_dwordx2 s[66:67], s[0:1], {ARG['bre']}
    s_load_dwordx2 s[68:69], s[0:1], {ARG['bim']}
    v_and_b32 v{VL}, 63, v0
    v_lshrrev_b32 v2, 6, v0
    s_nop 0
    v_readfirstlane_b32 s40, v2
    s_nop 3
    s_and_b32 s56, s2, 7
    s_lshl_b32 s56, s56, 2
    s_lshr_b32 s57, s2, 3
    s_and_b32 s57, s57, 3
    s_add_u32 s56, s56, s57
    s_lshr_b32 s57, s2, 5
    s_lshl_b32 s44, s57, 19
    s_mul_i32 s45, s56, 224
    s_mov_b32 s46, s45
    s_lshl_b32 s47, s56, 16
    s_mov_b32 s48, s47
    """)
    sreg = 74
    for rot in sorted(set(p.rot for p in pieces)):
        k(f"s_add_u32 s{sreg}, s40, {8-rot}\ns_and_b32 s{sreg}, s{sreg}, 7\ns_lshl_b32 s{sreg+1}, s{sreg}, 10")
        wks[rot] = (f"s{sreg}", f"s{sreg+1}"); sreg += 2
    k("s_waitcnt lgkmcnt(0)")
    def srd(d, lo, hi, nbytes, add=0):
        if add: k(f"s_add_u32 s{d}, s{lo}, {add}\ns_addc_u32 s{d+1}, s{hi}, 0")
        else: k(f"s_mov_b32 s{d}, s{lo}\ns_mov_b32 s{d+1}, s{hi}")
        k(f"s_mov_b32 s{d+2}, {nbytes}\ns_mov_b32 s{d+3}, 0x20000")
    srd(4, 60, 61, 0x400000, WS_XN); srd(8, 62, 63, 1024*3584*2); srd(12, 64, 65, 1024*3584*2)
    srd(16, 66, 67, 0x200000); srd(20, 68, 69, 0x200000); srd(24, 60, 61, 2048*3584*2, WS_ACT)
    srd(28, 60, 61, 0x800000, WS_BURE); srd(32, 60, 61, 0x800000, WS_BUIM)
    for p in pieces:
        for s_, vv in enumerate(p.vslots):
            k(f"s_lshl_b32 s96, {wks[p.rot][0]}, 6\ns_add_u32 s96, s96, {64*NW*s_}\nv_add_u32 v{t0}, s96, v{VL}")
            if p.flavor == 'KC':
                k(f"""v_lshrrev_b32 v{t1}, 2, v{t0}
                v_lshrrev_b32 v{t2}, 1, v{t1}
                v_xor_b32 v{t2}, v{t2}, v{t0}
                v_and_b32 v{t2}, 3, v{t2}
                v_lshlrev_b32 v{t2}, 4, v{t2}
                s_mov_b32 s96, {p.ld}
                v_mul_lo_u32 v{t1}, v{t1}, s96
                v_add_u32 v{vv}, v{t1}, v{t2}""")
            else:
                C = 14; magic = ((1 << 32) + C - 1)//C
                k(f"""s_mov_b32 s96, {magic}
                v_mul_hi_u32 v{t1}, v{t0}, s96
                v_mul_u32_u24 v{t2}, {C}, v{t1}
                v_sub_u32 v{t2}, v{t0}, v{t2}
                v_and_b32 v{t0}, 0xfffffff3, v{t1}
                v_lshrrev_b32 v{vv}, 1, v{t1}
                v_and_b32 v{vv}, 4, v{vv}
                v_or_b32 v{t0}, v{t0}, v{vv}
                v_lshlrev_b32 v{vv}, 1, v{t1}
                v_and_b32 v{vv}, 8, v{vv}
                v_or_b32 v{t1}, v{t0}, v{vv}
                v_lshlrev_b32 v{t2}, 4, v{t2}
                s_mov_b32 s96, {p.ld}
                v_mul_lo_u32 v{t1}, v{t1}, s96
                v_add_u32 v{vv}, v{t1}, v{t2}""")
    for p in pieces:
        if p.flavor == 'KC':
            vv = p.vbase[0]
            k(f"""v_lshrrev_b32 v{t0}, 4, v{VL}
            v_lshrrev_b32 v{t1}, 1, v{VL}
            v_xor_b32 v{t0}, v{t0}, v{t1}
            v_and_b32 v{t0}, 3, v{t0}
            v_lshlrev_b32 v{t0}, 4, v{t0}
            v_and_b32 v{t1}, 15, v{VL}
            v_lshlrev_b32 v{t1}, 6, v{t1}
            v_add_u32 v{vv}, v{t0}, v{t1}
            v_add_u32 v{vv}, {p.lds}, v{vv}""")
            if p is xn:
                k(f"s_lshl_b32 s58, s40, 11\nv_add_u32 v{vv}, s58, v{vv}")
        else:
            for h in range(2):
                vv = p.vbase[h]
                k(f"""v_lshrrev_b32 v{t0}, 4, v{VL}
                v_and_b32 v{t1}, 1, v{t0}
                v_lshlrev_b32 v{t1}, 2, v{t1}
                v_lshrrev_b32 v{t0}, 1, v{t0}
                v_lshlrev_b32 v{t0}, 4, v{t0}
                v_add_u32 v{t0}, v{t0}, v{t1}
                v_bfe_u32 v{t1}, v{VL}, 2, 2
                v_add3_u32 v{t0}, v{t0}, v{t1}, {8*h}
                v_mul_u32_u24 v{t0}, {14*16}, v{t0}
                v_and_b32 v{t1}, 3, v{VL}
                v_lshlrev_b32 v{t1}, 3, v{t1}
                v_add_u32 v{vv}, v{t0}, v{t1}
                v_add_u32 v{vv}, {p.lds}, v{vv}""")
    for alt in range(1, (S+1)//2):
        for b in range(nb, nb+VALT):
            k(f"v_add_u32 v{b+alt*VALT}, {2*STAGE*alt}, v{b}")
    NACC = 144
    for i in range(NACC):
        k(f"v_accvgpr_write_b32 a{i}, 0")
    def issue(stage):
        for p in pieces:
            for s_, vv in enumerate(p.vslots):
                full = (p.ndma - NW*s_) >= NW
                lab = None
                if not full:
                    lab = k.label("dskip")
                    k(f"s_cmp_lt_u32 {wks[p.rot][1]}, {(p.ndma - NW*s_)*1024}\ns_cbranch_scc0 {lab}")
                k(f"s_add_u32 m0, {wks[p.rot][1]}, {p.lds + stage*STAGE + 1024*NW*s_}\ns_nop 0")
                k(f"buffer_load_dwordx4 v{vv}, s[{p.srd}:{p.srd+3}], {p.soff} offen lds")
                if lab: k(f"{lab}:")
            k(f"s_add_u32 {p.soff}, {p.soff}, {p.kadv}")
    def waitvm(ntiles_left):
        vals = sorted(set(cnt))
        if ntiles_left == 0 or len(vals) == 1:
            k(f"s_waitcnt vmcnt({cnt[0]*ntiles_left})"); return
        assert len(vals) == 2
        hi = [w for w in range(NW) if cnt[w] == vals[1]]
        mask = sum(1 << w for w in hi)
        l1 = k.label("w"); l2 = k.label("w")
        k(f"s_lshl_b32 s97, 1, s40\ns_and_b32 s97, s97, {mask}\ns_cbranch_scc1 {l1}")
        k(f"s_waitcnt vmcnt({vals[0]*ntiles_left})\ns_branch {l2}\n{l1}:\ns_waitcnt vmcnt({vals[1]*ntiles_left})\n{l2}:")
    ablk = [(wg, i) for i in range(7)] + [(wu, i) for i in range(7)] + [(bre, 0), (bim, 0), (bre, 1), (bim, 1)]
    def rd(p, b, stage, dst):
        alt = VALT*(stage//2); so = (stage % 2)*STAGE
        if p.flavor == 'KC':
            return [f"ds_read_b128 v[{dst}:{dst+3}], v{p.vbase[0]+alt} offset:{so + 1024*b}"]
        return [f"ds_read_b64_tr_b16 v[{dst}:{dst+1}], v{p.vbase[0]+alt} offset:{so+32*b}",
                f"ds_read_b64_tr_b16 v[{dst+2}:{dst+3}], v{p.vbase[1]+alt} offset:{so+32*b}"]
    def stream(tiles, first, last_iter):
        reads = []; groups = []
        slot = 0
        tl = list(tiles) + [None]
        for ti, t in enumerate(tl):
            if t is None:
                if last_iter: break
                t = tiles[0] + S
            st = t % S
            bidx = []
            for j in range(2):
                dst = VB + 8*(t % 2) + 4*j
                reads.append((rd(xn, j, st, dst), dst, t)); bidx.append(len(reads)-1)
            for i, (p, b) in enumerate(ablk):
                dst = VA + 4*(slot % NSLOT); slot += 1
                reads.append((rd(p, b, st, dst), dst, t))
                if tl[ti] is not None:
                    ri = len(reads)-1
                    mf = [f"v_mfma_f32_16x16x32_bf16 a[{4*(2*i+j)}:{4*(2*i+j)+3}], v[{dst}:{dst+3}], v[{VB+8*(t%2)+4*j}:{VB+8*(t%2)+4*j+3}], a[{4*(2*i+j)}:{4*(2*i+j)+3}]" for j in range(2)]
                    groups.append((max(ri, *bidx), mf, ri))
        cum = []; c = 0
        for r in reads: c += len(r[0]); cum.append(c)
        issued = PRE if not first else 0
        synced = set([tiles[0]]) if not first else set()
        for gi, (need, mf, ri) in enumerate(groups):
            while issued < len(reads):
                dst = reads[issued][1]
                if issued > need:
                    ok = all(not (r2 < issued and reads[r2][1] == dst) for (_, _, r2) in groups[gi:])
                    if dst < VA:
                        tt = reads[issued][2]
                        ok = ok and all(reads[r2][2] != tt - 2 for (_, _, r2) in groups[gi:])
                    if cum[issued] - cum[need] > 12: ok = False
                    if gi == len(groups)-1 and issued >= len(reads) - (len(reads) - (NT_READS*len(tiles) + PRE)): ok = ok and True
                    if not ok: break
                    if issued >= NT_READS*len(tiles) + PRE: break
                tt = reads[issued][2]
                if tt not in synced:
                    synced.add(tt)
                    left = min(1, 31 - tt)
                    waitvm(left)
                    k("s_barrier")
                    if tt + 2 < 32 : issue((tt+2) % S)
                for ins in reads[issued][0]: k(ins)
                issued += 1
            k(f"s_waitcnt lgkmcnt({cum[issued-1]-cum[need]})")
            for m in mf: k(m)
        while not last_iter and issued < NT_READS*len(tiles) + PRE:
            tt = reads[issued][2]
            if tt not in synced:
                synced.add(tt); waitvm(min(1, 31-tt)); k("s_barrier")
                if tt + 2 < 32: issue((tt+2) % S)
            for ins in reads[issued][0]: k(ins)
            issued += 1
    NT_READS = 20
    PRE = 6
    issue(0); issue(1)
    stream([0,1,2,3], True, False)
    k("s_mov_b32 s59, 1")
    loop = k.label("loop")
    k(f"{loop}:")
    stream([4,5,6,7], False, False)
    k(f"s_add_u32 s59, s59, 1\ns_cmp_lt_u32 s59, 7\ns_cbranch_scc1 {loop}")
    stream([28,29,30,31], False, True)
    k("s_nop 7\ns_nop 7")
    if noepi: k("s_endpgm")
    import k_gemm1
    k_gemm1.epilogue(k, VL)
    k(f"{k.name}_end:")
    accum = (VEND + 3) & ~3
    return kernel_text(k, accum + NACC, 102, accum), S*STAGE
```

```python
from asmlib import *
from gemmlib import *

NW = 8
def gen_gemm2(NST=3, nocomp=False):
    k = K("gemm2_kernel")
    V_LANE = 1; VT = (2, 3, 4)
    TMB, TNB = 4, 8
    cA  = Piece("cA", 'KC', TMB, 4, 2048, "s44")
    hB  = Piece("hB", 'KC', TNB, 12, 4096, "s45")
    wdA = Piece("wd", 'KS', TMB, 16, 2048, "s46")
    acB = Piece("ac", 'KC', TNB, 20, 7168, "s47")
    STAGE = cA.bytes + hB.bytes
    cA.lds = 0; hB.lds = cA.bytes; wdA.lds = 0; acB.lds = cA.bytes
    v = 5
    for p in (cA, hB, wdA, acB):
        ns = (p.ndma + NW - 1)//NW
        p.vslots = list(range(v, v+ns)); v += ns
    cA.vbase = [v, v+1]; v += 2
    hB.vbase = [v, v+1]; v += 2
    acB.vbase = hB.vbase
    wdA.vbase = list(range(v, v+4)); v += 4
    VB0 = cA.vbase[0]; VALT = v - VB0; v += VALT*((NST+1)//2 - 1)
    v = (v + 3) & ~3
    VF = v; v += 4*8
    VEND = v
    k(f"""
    s_cmp_ge_u32 s2, 256
    s_cbranch_scc1 {k.name}_end
    s_load_dwordx2 s[60:61], s[0:1], {ARG['ws']}
    s_load_dwordx2 s[62:63], s[0:1], {ARG['cre']}
    s_load_dwordx2 s[64:65], s[0:1], {ARG['cim']}
    s_load_dwordx2 s[66:67], s[0:1], {ARG['wd']}
    s_load_dwordx2 s[68:69], s[0:1], {ARG['x']}
    s_load_dwordx2 s[70:71], s[0:1], {ARG['dskip']}
    s_load_dwordx2 s[72:73], s[0:1], {ARG['out']}
    v_and_b32 v{V_LANE}, 63, v0
    v_lshrrev_b32 v2, 6, v0
    s_nop 0
    v_readfirstlane_b32 s40, v2
    s_nop 3
    s_lshl_b32 s52, s40, 10
    s_and_b32 s56, s2, 15
    s_lshr_b32 s57, s2, 4
    s_lshl_b32 s44, s56, 17
    s_lshl_b32 s45, s57, 19
    s_lshl_b32 s46, s56, 7
    s_mul_i32 s47, s57, {128*7168}
    s_and_b32 s41, s40, 1
    s_lshl_b32 s41, s41, 1
    s_lshr_b32 s42, s40, 1
    s_lshl_b32 s42, s42, 1
    s_waitcnt lgkmcnt(0)
    """)
    def srd(d, lo, hi, nbytes, add=0):
        if add:
            k(f"s_add_u32 s{d}, s{lo}, {add}\ns_addc_u32 s{d+1}, s{hi}, 0")
        else:
            k(f"s_mov_b32 s{d}, s{lo}\ns_mov_b32 s{d+1}, s{hi}")
        k(f"s_mov_b32 s{d+2}, {nbytes}\ns_mov_b32 s{d+3}, 0x20000")
    srd(4, 62, 63, 0x200000)
    srd(8, 64, 65, 0x200000)
    srd(12, 60, 61, 0x800000, WS_H)
    srd(16, 66, 67, 3584*1024*2)
    srd(20, 60, 61, 2048*3584*2, WS_ACT)
    srd(24, 68, 69, 0x400000)
    srd(28, 60, 61, 0x400000, WS_XN)
    srd(32, 70, 71, 2048)
    srd(36, 72, 73, 0x800000)
    for p in (cA, hB, wdA, acB):
        emit_dma_setup(k, p, NW, VT, "s40", V_LANE)
    k("s_lshl_b32 s58, s41, 11\ns_lshl_b32 s59, s42, 11")
    emit_read_setup(k, cA, V_LANE, VT, extra_rows="s58")
    emit_read_setup(k, hB, V_LANE, VT, extra_rows="s59")
    emit_read_setup_ks_blk(k, wdA, V_LANE, VT, "s41", 2)
    for alt in range(1, (NST+1)//2):
        for b in range(VB0, VB0+VALT):
            k(f"v_add_u32 v{b+alt*VALT}, {2*STAGE*alt}, v{b}")
    for i in range(32):
        k(f"v_accvgpr_write_b32 a{i}, 0")
    k(f"s_mov_b32 s50, {STAGE}\ns_sub_u32 s51, 0, s50")
    def phase(A, B, ntiles, acc0, ks):
        def issue(stage):
            for p in (A, B):
                emit_dma_issue(k, p, NW, "s52", stage*STAGE)
        def advance():
            for p in (A, B):
                k(f"s_add_u32 {p.soff}, {p.soff}, {p.kadv}")
        def compute(stage):
            if nocomp: return
            def st(ins):
                o = int(ins.split("offset:")[1]) + (stage % 2)*STAGE
                assert o < 65536
                pre = ins.split("offset:")[0]
                if stage >= 2:
                    import re
                    m = re.search(r", v(\d+) $", pre)
                    pre = pre[:m.start()] + f", v{int(m.group(1)) + VALT*(stage//2)} "
                return pre + f"offset:{o}"
            for kk in range(2):
                for b in range(2):
                    for ins in (frag_reads_ks_blk(A, b, 2, kk, VF+16*kk+4*b) if ks else frag_reads(A, b, kk, VF+16*kk+4*b)):
                        k(st(ins))
                for b in range(2):
                    for ins in frag_reads(B, b, kk, VF+16*kk+8+4*b):
                        k(st(ins))
            n1 = 4 if not ks else 6
            for kk in range(2):
                k(f"s_waitcnt lgkmcnt({n1 if kk == 0 else 0})")
                for i in range(2):
                    for j in range(2):
                        a = acc0 + 4*(2*i+j)
                        k(f"v_mfma_f32_16x16x32_bf16 a[{a}:{a+3}], v[{VF+16*kk+4*i}:{VF+16*kk+4*i+3}], v[{VF+16*kk+8+4*j}:{VF+16*kk+8+4*j+3}], a[{a}:{a+3}]")
        def toggle(sign):
            for vb in A.vbase + B.vbase:
                k(f"v_add_u32 v{vb}, {'s50' if sign > 0 else 's51'}, v{vb}")
        S = NST; P = S - 1; ND = 3
        for t in range(P):
            if t: advance()
            issue(t)
        nmain = ntiles - P
        assert nmain % S == 0 or True
        ngrp = nmain // S
        k("s_mov_b32 s59, 0")
        loop = k.label("loop")
        k(f"{loop}:")
        for u in range(S):
            k(f"s_waitcnt vmcnt({ND*(P-1)})\ns_barrier")
            advance(); issue((u+P) % S)
            compute(u)
        k(f"s_add_u32 s59, s59, 1\ns_cmp_lt_u32 s59, {ngrp}\ns_cbranch_scc1 {loop}")
        for t in range(ngrp*S, ntiles):
            rem = ntiles - 1 - t
            if t < nmain:
                k(f"s_waitcnt vmcnt({ND*(P-1)})\ns_barrier")
                advance(); issue((t+P) % S)
            else:
                k(f"s_waitcnt vmcnt({ND*rem})\ns_barrier")
            compute(t % S)
        k("s_barrier")
    phase(cA, hB, 16, 0, False)
    k("s_add_u32 s45, s45, 128")
    k("s_lshl_b32 s44, s56, 17")
    cA.srd = 8
    phase(cA, hB, 16, 0, False)
    phase(wdA, acB, 56, 16, True)
    k("s_nop 7\ns_nop 7")
    k(f"""
    v_and_b32 v2, 15, v{V_LANE}
    s_lshl_b32 s58, s57, 7
    s_lshl_b32 s59, s42, 4
    s_add_u32 s58, s58, s59
    v_add_u32 v2, s58, v2
    v_lshrrev_b32 v3, 4, v{V_LANE}
    v_lshlrev_b32 v3, 2, v3
    s_lshl_b32 s58, s56, 6
    s_lshl_b32 s59, s41, 4
    s_add_u32 s58, s58, s59
    v_add_u32 v3, s58, v3
    v_lshlrev_b32 v5, 11, v2
    v_lshlrev_b32 v6, 1, v3
    v_add_u32 v5, v5, v6
    v_lshlrev_b32 v7, 1, v5
    """)
    E = 8
    for i in range(2):
        for j in range(2):
            o16 = 32*i + 16*2048*j
            k(f"buffer_load_dwordx2 v[{E}:{E+1}], v5, s[24:27], 0 offen offset:{32*i}" if j == 0 else
              f"v_add_u32 v4, {16*2048}, v5\nbuffer_load_dwordx2 v[{E}:{E+1}], v4, s[24:27], 0 offen offset:{32*i}")
            k(f"buffer_load_dwordx2 v[{E+2}:{E+3}], v{5 if j == 0 else 4}, s[28:31], 0 offen offset:{32*i}")
            k(f"buffer_load_dwordx2 v[{E+4}:{E+5}], v6, s[32:35], 0 offen offset:{32*i}")
            aS = 4*(2*i+j); aF = 16 + aS
            for r in range(4):
                k(f"v_accvgpr_read_b32 v{E+8+r}, a{aS+r}")
                k(f"v_accvgpr_read_b32 v{E+12+r}, a{aF+r}")
            k("s_waitcnt vmcnt(0)")
            for r in range(4):
                w = r//2
                ext = (lambda d, s_: f"v_lshlrev_b32 v{d}, 16, v{s_}") if r % 2 == 0 else (lambda d, s_: f"v_and_b32 v{d}, 0xffff0000, v{s_}")
                k(ext(E+16, E+w))
                k(ext(E+17, E+2+w))
                k(ext(E+18, E+4+w))
                k(f"""
                v_mul_f32 v{E+17}, v{E+17}, v{E+18}
                v_cvt_pk_bf16_f32 v{E+17}, v{E+17}, v{E+17}
                v_lshlrev_b32 v{E+17}, 16, v{E+17}
                v_fma_f32 v{E+17}, v{E+8+r}, 2.0, v{E+17}
                v_cvt_pk_bf16_f32 v{E+18}, v{E+12+r}, v{E+12+r}
                v_lshlrev_b32 v{E+18}, 16, v{E+18}
                v_mul_f32 v{E+19}, 0xbfb8aa3b, v{E+18}
                v_exp_f32 v{E+19}, v{E+19}
                s_nop 0
                v_add_f32 v{E+19}, 1.0, v{E+19}
                v_rcp_f32 v{E+19}, v{E+19}
                s_nop 0
                v_mul_f32 v{E+18}, v{E+18}, v{E+19}
                v_cvt_pk_bf16_f32 v{E+18}, v{E+18}, v{E+18}
                v_lshlrev_b32 v{E+18}, 16, v{E+18}
                v_fma_f32 v{E+20+r}, v{E+17}, v{E+18}, v{E+16}
                """)
            k(f"buffer_store_dwordx4 v[{E+20}:{E+23}], v7, s[36:39], 0 offen offset:{64*i}" if j == 0 else
              f"v_add_u32 v4, {16*4096}, v7\nbuffer_store_dwordx4 v[{E+20}:{E+23}], v4, s[36:39], 0 offen offset:{64*i}")
            k("s_nop 1")
    k(f"{k.name}_end:")
    accum = (max(VEND, 40) + 3) & ~3
    return kernel_text(k, accum + 32, 102, accum), NST*STAGE
```

```python
from asmlib import *
def gen_scan():
    k = K("scan_kernel")
    T = 64; CH = 16; NSEG = 32
    RE = 32; IM = 32 + T
    k(f"""
    s_cmp_ge_u32 s2, 64
    s_cbranch_scc1 {k.name}_end
    s_load_dwordx2 s[4:5], s[0:1], {ARG['lre']}
    s_load_dwordx2 s[6:7], s[0:1], {ARG['lim']}
    s_load_dwordx2 s[8:9], s[0:1], {ARG['logdt']}
    s_load_dwordx2 s[10:11], s[0:1], {ARG['ws']}
    v_and_b32 v1, 15, v0
    v_lshrrev_b32 v2, 4, v0
    s_lshl_b32 s3, s2, 4
    v_add_u32 v3, s3, v1
    v_lshlrev_b32 v4, 1, v3
    s_waitcnt lgkmcnt(0)
    """)
    def srd(d, lo, hi, nbytes, add=0):
        if add:
            k(f"s_add_u32 s{d}, s{lo}, {add}\ns_addc_u32 s{d+1}, s{hi}, 0")
        else:
            k(f"s_mov_b32 s{d}, s{lo}\ns_mov_b32 s{d+1}, s{hi}")
        k(f"s_mov_b32 s{d+2}, {nbytes}\ns_mov_b32 s{d+3}, 0x20000")
    srd(12, 4, 5, 2048); srd(16, 6, 7, 2048); srd(20, 8, 9, 2048)
    srd(24, 10, 11, 0x800000, WS_BURE); srd(28, 10, 11, 0x800000, WS_BUIM); srd(32, 10, 11, 0x800000, WS_H)
    k(f"""
    buffer_load_ushort v5, v4, s[12:15], 0 offen
    buffer_load_ushort v6, v4, s[16:19], 0 offen
    buffer_load_ushort v7, v4, s[20:23], 0 offen
    v_lshlrev_b32 v8, 18, v2
    v_lshlrev_b32 v9, 2, v3
    v_add_u32 v8, v8, v9
    """)
    for i in range(T):
        k(f"s_mov_b32 s40, {i*4096}")
        k(f"buffer_load_dword v{RE+i}, v8, s[24:27], s40 offen")
        k(f"buffer_load_dword v{IM+i}, v8, s[28:31], s40 offen")
    k(f"""
    s_waitcnt vmcnt(63)
    v_lshlrev_b32 v5, 16, v5
    v_lshlrev_b32 v6, 16, v6
    v_lshlrev_b32 v7, 16, v7
    v_mul_f32 v7, 0x3fb8aa3b, v7
    v_exp_f32 v7, v7
    s_nop 0
    v_cvt_pk_bf16_f32 v7, v7, v7
    v_lshlrev_b32 v7, 16, v7
    v_mul_f32 v9, v7, v5
    v_mul_f32 v10, v7, v6
    v_mul_f32 v9, 0x3fb8aa3b, v9
    v_exp_f32 v9, v9
    v_mul_f32 v10, 0.15915494, v10
    v_cos_f32 v11, v10
    v_sin_f32 v12, v10
    s_nop 0
    v_mul_f32 v11, v9, v11
    v_mul_f32 v12, v9, v12
    v_add_f32 v13, -1.0, v11
    v_mul_f32 v14, v5, v5
    v_fmac_f32 v14, v6, v6
    v_rcp_f32 v14, v14
    v_mul_f32 v15, v13, v5
    v_fmac_f32 v15, v12, v6
    v_mul_f32 v16, v12, v5
    v_fma_f32 v16, -v13, v6, v16
    v_mul_f32 v15, v15, v14
    v_mul_f32 v16, v16, v14
    """)
    k("v_mov_b32 v17, 0\nv_mov_b32 v18, 0")
    for i in range(T):
        k(f"s_waitcnt vmcnt({min(63, 2*(T-1-i))})")
        k(f"""
        v_mul_f32 v19, v15, v{RE+i}
        v_mul_f32 v20, v15, v{IM+i}
        v_fma_f32 v19, -v16, v{IM+i}, v19
        v_fmac_f32 v20, v16, v{RE+i}
        v_fmac_f32 v19, v11, v17
        v_fmac_f32 v20, v11, v18
        v_fma_f32 v19, -v12, v18, v19
        v_fmac_f32 v20, v12, v17
        v_mov_b32 v17, v19
        v_mov_b32 v18, v20
        v_mov_b32 v{RE+i}, v19
        v_mov_b32 v{IM+i}, v20
        """)
    k(f"""
    v_lshlrev_b32 v21, 3, v0
    v_mov_b32 v28, v17
    v_mov_b32 v29, v18
    ds_write_b64 v21, v[28:29]
    v_mov_b32 v22, v11
    v_mov_b32 v23, v12
    """)
    for _ in range(6):
        k("""
        v_mul_f32 v24, v22, v22
        v_mul_f32 v25, v22, v23
        v_fma_f32 v22, -v23, v23, v24
        v_add_f32 v23, v25, v25
        """)
    k(f"""
    s_waitcnt lgkmcnt(0)
    s_barrier
    v_lshlrev_b32 v21, 3, v1
    v_mov_b32 v17, 0
    v_mov_b32 v18, 0
    """)
    for j0 in range(0, NSEG-1, 16):
        js = list(range(j0, min(j0+16, NSEG-1)))
        for j in js:
            k(f"ds_read_b64 v[{160+2*(j-j0)}:{161+2*(j-j0)}], v21 offset:{8*CH*j}")
        for j in js:
            k(f"""
        s_waitcnt lgkmcnt({js[-1]-j})
        v_cmp_lt_u32 vcc, {j}, v2
        v_mul_f32 v24, v22, v17
        v_mul_f32 v25, v22, v18
        v_fma_f32 v24, -v23, v18, v24
        v_fmac_f32 v25, v23, v17
        v_add_f32 v24, v24, v{160+2*(j-j0)}
        v_add_f32 v25, v25, v{161+2*(j-j0)}
        v_cndmask_b32 v17, v17, v24, vcc
        v_cndmask_b32 v18, v18, v25, vcc
        """)
    k(f"""
    v_lshlrev_b32 v8, 18, v2
    v_lshlrev_b32 v9, 1, v3
    v_add_u32 v8, v8, v9
    """)
    for i in range(T):
        k(f"""
        v_mul_f32 v24, v11, v17
        v_mul_f32 v25, v11, v18
        v_fma_f32 v24, -v12, v18, v24
        v_fmac_f32 v25, v12, v17
        v_mov_b32 v17, v24
        v_mov_b32 v18, v25
        v_add_f32 v{RE+i}, v{RE+i}, v24
        v_add_f32 v{IM+i}, v{IM+i}, v25
        v_cvt_pk_bf16_f32 v26, v{RE+i}, -v{IM+i}
        s_mov_b32 s40, {i*4096}
        buffer_store_short v26, v8, s[32:35], s40 offen
        buffer_store_short_d16_hi v26, v8, s[32:35], s40 offen offset:2048
        """)
    k(f"{k.name}_end:")
    return kernel_text(k, 224, 48, 224)
```

```python
import sys
from asmlib import *
from k_ln import gen_ln
from k_gemm1 import gen_gemm1
from k_scan import gen_scan
from k_gemm2 import gen_gemm2
hdr = open("recurrent_scan__ssm_conv_s5__geglu_ffn__prompt.s.ref").read()
cm = [l for l in hdr.split("\n") if l.startswith(";") and "@launch" not in l]
import os
from k_gemm1b import gen_gemm1b
g1, lds1 = gen_gemm1b(**eval(os.environ.get('G1OPT','{}')))
g2, lds2 = gen_gemm2(**eval(os.environ.get('G2OPT','{}')))
launches = ["; @launch kernel=ln_kernel grid=(512,1,1) block=(256,1,1) lds=0",
            f"; @launch kernel=gemm1_kernel grid=(256,1,1) block=(512,1,1) lds={lds1}",
            "; @launch kernel=scan_kernel grid=(64,1,1) block=(512,1,1) lds=4096",
            f"; @launch kernel=gemm2_kernel grid=(256,1,1) block=(512,1,1) lds={lds2}"]
body = [gen_ln(), g1, gen_scan(), g2]
txt = "\n".join(cm[:-2]) + "\n" + "\n".join(launches) + '\n.amdgcn_target "amdgcn-amd-amdhsa--gfx950"\n' + "\n".join(body)
open(sys.argv[1] if len(sys.argv) > 1 else "out.s", "w").write(txt)
```
